```python
import torch

def _softmax(x, axis=-1):
    return torch.softmax(x, dim=axis)
def _gelu(x):
    return torch.nn.functional.gelu(x, approximate="tanh")
def _silu(x):
    return torch.nn.functional.silu(x)
def _sigmoid(x):
    return torch.sigmoid(x)
def _layernorm(x, axis=-1, eps=1e-5):
    m = x.mean(dim=axis, keepdim=True)
    v = x.var(dim=axis, keepdim=True, unbiased=False)
    return (x - m) / torch.sqrt(v + eps)
def _scatter_add(tgt, idx, src, axis=0):
    return tgt.clone().index_add_(axis, idx, src)
def _segment_sum(src, seg, n):
    out = torch.zeros((n,) + src.shape[1:], dtype=src.dtype)
    return out.index_add_(0, seg, src)
def _pad(x, pw):
    flat = tuple(v for pair in reversed(pw) for v in pair)
    return torch.nn.functional.pad(x, flat)

kernel_name = 'gated_mix__spectral_fnet__glu_gated_glu__prompt'

def setup_inputs():

    _w = (lambda a: (lambda t: t.to(torch.bfloat16) if t.is_floating_point() else t)(torch.as_tensor(a)))
    def _A_setup():
        B, S, D = 1, 2048, 448
        ns = torch.arange(S)[:, None] * torch.arange(S)[None, :]
        nd = torch.arange(D)[:, None] * torch.arange(D)[None, :]
        Ws_re = torch.cos(-2.0 * torch.pi * ns / S).to(float)
        Ws_im = torch.sin(-2.0 * torch.pi * ns / S).to(float)
        Wd_re = torch.cos(-2.0 * torch.pi * nd / D).to(float)
        Wd_im = torch.sin(-2.0 * torch.pi * nd / D).to(float)
        return {
            "x": _w((lambda *s: torch.randn(*s, dtype=torch.bfloat16) * 0.05)(B, S, D)),
            "dft_seq_re": _w(Ws_re),
            "dft_seq_im": _w(Ws_im),
            "dft_hid_re": _w(Wd_re),
            "dft_hid_im": _w(Wd_im),
        }
    _A_in = _A_setup()

    def _B_setup():
        B, S, D, F = 1, 2048, 448, 1792
        return {
            "x": _w((lambda *s: torch.randn(*s, dtype=torch.bfloat16) * 0.05)(B, S, D)),
            "w_gate": _w((lambda *s: torch.randn(*s, dtype=torch.bfloat16) * 1.6)(D, F)),
            "w_up": _w((lambda *s: torch.randn(*s, dtype=torch.bfloat16) * 0.8)(D, F)),
            "w_down": _w((lambda *s: torch.randn(*s, dtype=torch.bfloat16) * 0.8)(F, D)),
        }
    _B_in = _B_setup()

    return {
        "A_x": _A_in["x"],
        "A_dft_seq_re": _A_in["dft_seq_re"],
        "A_dft_seq_im": _A_in["dft_seq_im"],
        "A_dft_hid_re": _A_in["dft_hid_re"],
        "A_dft_hid_im": _A_in["dft_hid_im"],
        "B_x": _B_in["x"],
        "B_w_gate": _B_in["w_gate"],
        "B_w_up": _B_in["w_up"],
        "B_w_down": _B_in["w_down"],
        "gate_w": _w((lambda *s: torch.randn(*s, dtype=torch.bfloat16) * 0.05)(448) * 16.0),
    }

def reference(A_x, A_dft_seq_re, A_dft_seq_im, A_dft_hid_re, A_dft_hid_im, B_x, B_w_gate, B_w_up, B_w_down, gate_w):
    def _A_ref(x, dft_seq_re, dft_seq_im, dft_hid_re, dft_hid_im):
        a = torch.einsum("bsd,ed->bse", x, dft_hid_re)
        b = torch.einsum("bsd,ed->bse", x, dft_hid_im)
        y = torch.einsum("ts,bse->bte", dft_seq_re, a) - torch.einsum("ts,bse->bte", dft_seq_im, b)
        return y

    def _B_ref(x, w_gate, w_up, w_down):
        g = torch.einsum("bsd,df->bsf", x, w_gate)
        u = torch.einsum("bsd,df->bsf", x, w_up)
        h = _sigmoid(g) * u
        return torch.einsum("bsf,fd->bsd", h, w_down)

    x = A_x
    g = _sigmoid((x * gate_w).sum(-1, keepdims=True))
    a = _A_ref(x, A_dft_seq_re, A_dft_seq_im, A_dft_hid_re, A_dft_hid_im)
    b = _B_ref(x, B_w_gate, B_w_up, B_w_down)
    return g * a + (1 - g) * b
```

```python
class Asm:
    def __init__(self):
        self.lines = []
        self.vm = []
        self.lg = []
        self.uid = 0
    def e(self, s):
        self.lines.append('    ' + s)
    def c(self, s):
        self.lines.append('    ; ' + s)
    def label(self, s):
        self.lines.append(s + ':')
    def raw(self, s):
        self.lines.append(s)
    def newlabel(self, base):
        self.uid += 1
        return f'L_{base}_{self.uid}'
    def vmem(self, s, tag=None):
        self.e(s)
        self.vm.append(tag)
    def wait_vm(self, tags):
        if not isinstance(tags, (list, tuple, set)):
            tags = [tags]
        idx = -1
        for i, t in enumerate(self.vm):
            if t in tags:
                idx = i
        if idx < 0:
            return
        n = len(self.vm) - 1 - idx
        n = min(n, 63)
        self.e(f's_waitcnt vmcnt({n})')
        self.vm = self.vm[len(self.vm) - n:] if n > 0 else []
    def wait_vm_all(self):
        self.e('s_waitcnt vmcnt(0)')
        self.vm = []
    def lds(self, s, tag=None):
        self.e(s)
        self.lg.append(tag)
    def wait_lg(self, tags):
        if not isinstance(tags, (list, tuple, set)):
            tags = [tags]
        idx = -1
        for i, t in enumerate(self.lg):
            if t in tags:
                idx = i
        if idx < 0:
            return
        n = len(self.lg) - 1 - idx
        n = min(n, 15)
        self.e(f's_waitcnt lgkmcnt({n})')
        self.lg = self.lg[len(self.lg) - n:] if n > 0 else []
    def wait_lg_all(self):
        self.e('s_waitcnt lgkmcnt(0)')
        self.lg = []
    def nop(self, n):
        while n > 0:
            k = min(n, 16)
            self.e(f's_nop {k-1}')
            n -= k
    def text(self):
        return '\n'.join(self.lines) + '\n'

def vr(b, n=1):
    return f'v{b}' if n == 1 else f'v[{b}:{b+n-1}]'
def ar(b, n=1):
    return f'a{b}' if n == 1 else f'a[{b}:{b+n-1}]'
def sr(b, n=1):
    return f's{b}' if n == 1 else f's[{b}:{b+n-1}]'
```

```python
import sys
from asmlib import Asm, vr, ar, sr

NAME = 'gated_mix__spectral_fnet__glu_gated_glu__prompt'
S_, D_, F_ = 2048, 448, 1792

WS_H = 0
H_BYTES = 64 * 56 * 2048
WS_V = 8 << 20
V_BYTES = 32 * 65536
WS_L = 10 << 20
L_BYTES = 64 * 32 * 4

LOG2E = 0x3fb8aa3b
NLOG2E = 0xbfb8aa3b

HEADER = '''; Kernarg layout for this problem (104 bytes, ptrs only, base s[0:1]):
'''

def srd(a, dst, base_lo, nbytes, add=0):
    if add:
        a.e(f's_add_u32 s{dst}, s{base_lo}, {add}')
        a.e(f's_addc_u32 s{dst+1}, s{base_lo+1}, 0')
    else:
        a.e(f's_mov_b32 s{dst}, s{base_lo}')
        a.e(f's_mov_b32 s{dst+1}, s{base_lo+1}')
    a.e(f's_mov_b32 s{dst+2}, {nbytes}')
    a.e(f's_mov_b32 s{dst+3}, 0x20000')

K1_NX = 5
K1_NW = 5
K1_SBASE = 0
K1_PBASE = K1_NW * 16384
K1_LDS = (K1_NX + K1_NW) * 16384

S_W = 4
S_SOFFP = 8
S_SOFFS = 9
S_LDSP = 10
S_LDSS = 11
SRD_P1 = 12
SRD_P2 = 16
SRD_S = 20
SRD_O = 24
SRD_CR = 28
SRD_CI = 32
SRD_L = 36
S_ST0 = 40
S_ST1 = 41
S_C1 = 42
S_TMP = 5
S_TMP2 = 6
S_TMP3 = 7
P_AX, P_SR, P_SI, P_HR, P_HI, P_BX, P_WG, P_WU, P_WD, P_GW, P_OUT, P_DBG, P_WS = [64 + 2 * i for i in range(13)]

V_LANE = 1
V_OFFP = 4
V_OFFS = 8
V_AP = 12
V_BT = 16
V_PRD = 20
V_SRD = 24
V_T = 28
V_ACC = 64
V_E = 192
A_P = 0
A_SF = 112
A_CR = 144
A_CI = 152

def load_kernargs(a):
    a.e('s_load_dwordx16 s[64:79], s[0:1], 0')
    a.e('s_load_dwordx8 s[80:87], s[0:1], 64')
    a.e('s_load_dwordx2 s[88:89], s[0:1], 96')

def k1_common_lane(a):
    a.e(f'v_lshrrev_b32 v2, 6, v0')
    a.e(f'v_and_b32 v{V_LANE}, 63, v0')
    a.e('s_nop 0')
    a.e(f'v_readfirstlane_b32 s{S_W}, v2')
    a.e(f'v_and_b32 v2, 31, v{V_LANE}')
    a.e(f'v_lshrrev_b32 v3, 5, v{V_LANE}')
    a.e(f'v_bfe_u32 v{V_T}, v2, 1, 3')
    a.e(f'v_xor_b32 v{V_T}, v{V_T}, v3')
    a.e(f'v_lshlrev_b32 v{V_T}, 4, v{V_T}')
    a.e(f'v_lshl_add_u32 v{V_AP}, v2, 7, v{V_T}')
    for s in range(1, 4):
        a.e(f'v_xor_b32 v{V_AP+s}, {32*s}, v{V_AP}')

def dma(a, voff, srd_, soff, m0base, m0add, tag):
    a.e(f's_add_u32 m0, s{m0base}, {m0add}')
    a.e('s_nop 0')
    a.vmem(f'buffer_load_dwordx4 v{voff}, s[{srd_}:{srd_+3}], s{soff} offen lds', tag)

class K1Path:
    pass

def k1_issue_P(a, path, kc):
    slot = kc % K1_NX
    a.e(f's_add_u32 s{S_TMP}, s{S_SOFFP}, {kc*128}')
    for j in range(4):
        srd_ = SRD_P1 if (j < 2 or path == 'G') else SRD_P2
        dma(a, V_OFFP + j, srd_, S_TMP, S_LDSP, slot * 16384 + j * 1024, ('P', kc))

def k1_issue_S(a, path, g):
    p, kc = divmod(g, 7)
    slot = g % K1_NW
    if path == 'G':
        off = kc * 64 * 3584 + p * 128
    else:
        off = kc * 128 + p * 4 * 896
    a.e(f's_add_u32 s{S_TMP}, s{S_SOFFS}, {off}')
    for q in range(4):
        dma(a, V_OFFS + q, SRD_S, S_TMP, S_LDSS, slot * 16384 + q * 1024, ('S', g))

def k1_stage_addr(a, path, g):
    p, kc = divmod(g, 7)
    sb = K1_SBASE + (g % K1_NW) * 16384
    if path == 'G':
        for T in range(2):
            a.e(f'v_add_u32 v{V_SRD+T}, {sb}, v{V_BT+T}')
    else:
        for s in range(4):
            a.e(f'v_add_u32 v{V_SRD+s}, {sb}, v{V_AP+s}')
    if p == 0:
        a.e(f's_add_u32 s{S_TMP}, s{S_LDSP}, {(kc % K1_NX) * 16384}')
        for s in range(4):
            a.e(f'v_add_u32 v{V_PRD+s}, s{S_TMP}, v{V_AP+s}')

def k1_read_P(a, u):
    s = u % 4
    a.lds(f'ds_read_b128 {ar(A_P + 4*u, 4)}, v{V_PRD+s}', ('PF', u))

def k1_read_S(a, path, u, j):
    s = u % 4
    buf = A_SF + (u % 2) * 16 + j * 4
    if path == 'G':
        m, T = j >> 1, j & 1
        for uu in range(2):
            off = m * 8192 + s * 2048 + uu * 512
            a.lds(f'ds_read_b64_tr_b16 {ar(buf + 2*uu, 2)}, v{V_SRD+T} offset:{off}', ('SF', u, j))
    else:
        a.lds(f'ds_read_b128 {ar(buf, 4)}, v{V_SRD+s} offset:{j*4096}', ('SF', u, j))

def k1_main(a, path, epilogue):
    NG = 14
    for st in range(max(K1_NX, K1_NW)):
        if st < K1_NX:
            k1_issue_P(a, path, st)
        if st < K1_NW:
            k1_issue_S(a, path, st)
    path_setup_late(a, path)
    a.wait_vm([('P', 0), ('S', 0)])
    a.e('s_barrier')
    k1_stage_addr(a, path, 0)
    k1_read_P(a, 0)
    for j in range(4):
        k1_read_S(a, path, 0, j)
    for u in range(4 * NG):
        g, s = divmod(u, 4)
        p, kc = divmod(g, 7)
        nu = u + 1
        if s == 3 and g + 1 < NG:
            tags = [('S', g + 1)]
            if p == 0 and kc + 1 < 7:
                tags.append(('P', kc + 1))
            a.wait_vm(tags)
            a.e('s_barrier')
            if g >= 1:
                gs = g - 1 + K1_NW
                if gs < NG:
                    k1_issue_S(a, path, gs)
                kp = g - 1 + K1_NX
                if kp < 7:
                    k1_issue_P(a, path, kp)
            k1_stage_addr(a, path, g + 1)
        ku = 4 * kc + s
        for j in range(4):
            tags = [('SF', u, j)]
            if j == 0 and p == 0:
                tags.append(('PF', u))
            a.wait_lg(tags)
            acc = V_ACC + p * 64 + j * 16
            buf = A_SF + (u % 2) * 16 + j * 4
            cin = '0' if (kc == 0 and s == 0) else vr(acc, 16)
            a.e(f'v_mfma_f32_32x32x16_bf16 {vr(acc,16)}, {ar(buf,4)}, {ar(A_P + 4*ku, 4)}, {cin}')
            if nu < 4 * NG:
                if j == 0 and nu < 28:
                    k1_read_P(a, nu)
                k1_read_S(a, path, nu, j)
        if u == 27 or u == 55:
            epilogue(a, p)

def path_setup_late(a, path):
    pass

def g1_epilogue(a, p):
    acc = V_ACC + p * 64
    a.c(f'G1 epilogue pass {p}')
    a.nop(12)
    for T in range(2):
        G = acc + 16 * T
        U = acc + 32 + 16 * T
        t = V_E + 16 * T
        for i in range(16):
            a.e(f'v_mul_f32 v{t+i}, s{S_C1}, v{G+i}')
        for i in range(16):
            a.e(f'v_exp_f32 v{t+i}, v{t+i}')
        for i in range(16):
            a.e(f'v_add_f32 v{t+i}, 1.0, v{t+i}')
        for i in range(16):
            a.e(f'v_rcp_f32 v{t+i}, v{t+i}')
        for i in range(16):
            a.e(f'v_mul_f32 v{t+i}, v{t+i}, v{U+i}')
        pk = V_E + 32 + 8 * T
        for i in range(8):
            a.e(f'v_cvt_pk_bf16_f32 v{pk+i}, v{t+2*i}, v{t+2*i+1}')
        st = S_ST0 if p == 0 else S_ST1
        for ks in range(2):
            a.vmem(f'buffer_store_dwordx4 {vr(pk+4*ks,4)}, v{V_T}, s[{SRD_O}:{SRD_O+3}], s{st} offen offset:{T*2048 + ks*1024}', ('ST', p, T, ks))

def gen_k1(a):
    name = 'k1_kernel'
    a.raw('.text')
    a.raw(f'.globl {name}')
    a.raw('.p2align 8')
    a.raw(f'.type {name},@function')
    a.label(name)
    a.e('s_cmp_ge_u32 s2, 256')
    a.e('s_cbranch_scc1 L_k1_done')
    load_kernargs(a)
    k1_common_lane(a)
    a.e(f's_lshl_b32 s{S_TMP}, s{S_W}, 12')
    a.e(f's_add_u32 s{S_LDSP}, s{S_TMP}, {K1_PBASE}')
    a.e(f's_add_u32 s{S_LDSS}, s{S_TMP}, {K1_SBASE}')
    a.e('s_and_b32 s3, s2, 7')
    a.e('s_lshr_b32 s2, s2, 3')
    a.e('s_waitcnt lgkmcnt(0)')
    a.e('s_cmp_ge_u32 s2, 28')
    a.e('s_cbranch_scc1 L_k1_a1')

    a.c('G1 path: mt = 4*(x>>1) + (li&3), fc = 7*(x&1) + (li>>2)')
    a.e(f's_lshr_b32 s{S_TMP}, s3, 1')
    a.e(f's_lshl_b32 s{S_TMP}, s{S_TMP}, 2')
    a.e(f's_and_b32 s{S_TMP2}, s2, 3')
    a.e(f's_add_u32 s{S_TMP}, s{S_TMP}, s{S_TMP2}')
    a.e(f's_and_b32 s{S_TMP2}, s3, 1')
    a.e(f's_mul_i32 s{S_TMP2}, s{S_TMP2}, 7')
    a.e(f's_lshr_b32 s{S_TMP3}, s2, 2')
    a.e(f's_add_u32 s{S_TMP2}, s{S_TMP2}, s{S_TMP3}')
    a.e(f's_lshl_b32 s{S_TMP}, s{S_TMP}, 2')
    a.e(f's_add_u32 s{S_TMP}, s{S_TMP}, s{S_W}')
    a.e(f's_mul_i32 s{S_ST0}, s{S_TMP}, 56')
    a.e(f's_lshl_b32 s{S_TMP3}, s{S_TMP2}, 2')
    a.e(f's_add_u32 s{S_ST0}, s{S_ST0}, s{S_TMP3}')
    a.e(f's_lshl_b32 s{S_ST0}, s{S_ST0}, 11')
    a.e(f's_add_u32 s{S_ST1}, s{S_ST0}, 4096')
    a.e(f's_lshr_b32 s{S_TMP3}, s{S_TMP}, 1')
    a.e(f's_and_b32 s{S_TMP}, s{S_TMP}, 1')
    a.e(f's_lshl_b32 s{S_TMP}, s{S_TMP}, 10')
    a.e(f's_add_u32 s{S_TMP}, s{S_TMP}, s{S_TMP3}')
    a.e(f's_mul_i32 s{S_SOFFP}, s{S_TMP}, 896')
    a.e(f's_and_b32 s{S_TMP}, s{S_W}, 1')
    a.e(f's_mul_i32 s{S_TMP}, s{S_TMP}, {32*3584}')
    a.e(f's_lshl_b32 s{S_TMP2}, s{S_TMP2}, 8')
    a.e(f's_add_u32 s{S_SOFFS}, s{S_TMP}, s{S_TMP2}')
    srd(a, SRD_P1, P_AX, S_ * D_ * 2)
    a.e(f's_cmp_lt_u32 s{S_W}, 2')
    a.e(f's_cselect_b32 s{SRD_S}, s{P_WG}, s{P_WU}')
    a.e(f's_cselect_b32 s{SRD_S+1}, s{P_WG+1}, s{P_WU+1}')
    a.e(f's_mov_b32 s{SRD_S+2}, {D_*F_*2}')
    a.e(f's_mov_b32 s{SRD_S+3}, 0x20000')
    srd(a, SRD_O, P_WS, H_BYTES, WS_H)
    a.e(f's_mov_b32 s{S_C1}, {NLOG2E:#x}')
    a.e(f'v_lshrrev_b32 v2, 3, v{V_LANE}')
    a.e(f'v_and_b32 v3, 7, v{V_LANE}')
    a.e(f'v_lshrrev_b32 v{V_T}, 4, v{V_LANE}')
    a.e(f's_mov_b32 s{S_TMP}, {32*896}')
    a.e(f'v_mul_lo_u32 v{V_T+1}, v2, s{S_TMP}')
    for j in range(4):
        a.e(f'v_add_u32 v{V_T+2}, {4*j}, v{V_T}')
        a.e(f'v_and_b32 v{V_T+2}, 7, v{V_T+2}')
        a.e(f'v_xor_b32 v{V_T+2}, v{V_T+2}, v3')
        a.e(f'v_lshl_add_u32 v{V_T+2}, v{V_T+2}, 4, v{V_T+1}')
        a.e(f'v_add_u32 v{V_OFFP+j}, {8*j*32*896}, v{V_T+2}')
    a.e(f's_mov_b32 s{S_TMP}, 3584')
    a.e(f'v_mul_lo_u32 v{V_T+1}, v2, s{S_TMP}')
    a.e(f'v_and_b32 v{V_T+2}, 1, v{V_T}')
    a.e(f'v_lshlrev_b32 v{V_T+2}, 2, v{V_T+2}')
    a.e(f'v_xor_b32 v{V_T+2}, v{V_T+2}, v3')
    a.e(f'v_lshl_add_u32 v{V_T+2}, v{V_T+2}, 4, v{V_T+1}')
    for q in range(4):
        a.e(f'v_add_u32 v{V_OFFS+q}, {8*q*3584}, v{V_T+2}')
    a.e(f'v_lshrrev_b32 v2, 5, v{V_LANE}')
    a.e(f'v_bfe_u32 v3, v{V_LANE}, 2, 2')
    a.e(f'v_lshl_add_u32 v2, v2, 3, v3')
    a.e(f'v_lshlrev_b32 v2, 7, v2')
    a.e(f'v_bfe_u32 v3, v{V_LANE}, 3, 1')
    a.e(f'v_lshl_add_u32 v2, v3, 6, v2')
    a.e(f'v_bfe_u32 v3, v{V_LANE}, 4, 1')
    a.e(f'v_lshl_add_u32 v2, v3, 5, v2')
    a.e(f'v_and_b32 v3, 3, v{V_LANE}')
    a.e(f'v_lshl_add_u32 v{V_BT}, v3, 3, v2')
    a.e(f'v_xor_b32 v{V_BT+1}, 64, v{V_BT}')
    a.e(f'v_lshlrev_b32 v{V_T}, 4, v{V_LANE}')
    a.vm = []; a.lg = []
    k1_main(a, 'G', g1_epilogue)
    a.e('s_endpgm')

    a.label('L_k1_a1')
    a.c('A1 path: jblk = x, q = li - 28')
    a.e('s_sub_u32 s2, s2, 28')
    a.e(f's_lshl_b32 s{S_TMP}, s2, 2')
    a.e(f's_add_u32 s{S_TMP}, s{S_TMP}, s{S_W}')
    a.e(f's_cmp_eq_u32 s{S_TMP}, 15')
    a.e(f's_cselect_b32 s{S_C1}, 1, 0')
    a.e(f's_lshl_b32 s{S_TMP}, s{S_TMP}, 4')
    a.e(f's_cmp_eq_u32 s{S_C1}, 1')
    a.e(f's_cselect_b32 s{S_TMP2}, 0, 896')
    a.e(f's_mul_i32 s{S_SOFFP}, s{S_TMP}, s{S_TMP2}')
    a.e(f's_cselect_b32 s{SRD_P1}, s{P_GW}, s{P_HR}')
    a.e(f's_cselect_b32 s{SRD_P1+1}, s{P_GW+1}, s{P_HR+1}')
    a.e(f's_mov_b32 s{S_TMP3}, {D_*D_*2}')
    a.e(f's_cselect_b32 s{SRD_P1+2}, {D_*2}, s{S_TMP3}')
    a.e(f's_mov_b32 s{SRD_P1+3}, 0x20000')
    a.e(f's_cselect_b32 s{SRD_P2}, s{P_GW}, s{P_HI}')
    a.e(f's_cselect_b32 s{SRD_P2+1}, s{P_GW+1}, s{P_HI+1}')
    a.e(f's_cselect_b32 s{SRD_P2+2}, {D_*2}, s{S_TMP3}')
    a.e(f's_mov_b32 s{SRD_P2+3}, 0x20000')
    a.e(f's_lshl_b32 s{S_ST0}, s3, 13')
    a.e(f's_lshl_b32 s{S_TMP}, s{S_TMP}, 5')
    a.e(f's_add_u32 s{S_ST0}, s{S_ST0}, s{S_TMP}')
    a.e(f's_lshl_b32 s{S_ST1}, s3, 10')
    a.e(f's_lshl_b32 s{S_TMP}, s3, 3')
    a.e(f's_add_u32 s{S_TMP}, s{S_TMP}, s{S_W}')
    a.e(f's_mul_i32 s{S_SOFFS}, s{S_TMP}, 896')
    srd(a, SRD_S, P_AX, S_ * D_ * 2)
    srd(a, SRD_O, P_WS, V_BYTES, WS_V)
    srd(a, SRD_L, P_WS, L_BYTES, WS_L)
    srd(a, SRD_CR, P_SR, S_ * S_ * 2)
    srd(a, SRD_CI, P_SI, S_ * S_ * 2)
    a.e(f'v_lshrrev_b32 v2, 3, v{V_LANE}')
    a.e(f'v_and_b32 v3, 7, v{V_LANE}')
    a.e(f'v_lshrrev_b32 v{V_T}, 4, v{V_LANE}')
    for j in range(4):
        a.e(f'v_add_u32 v{V_T+1}, {(8*j) & 15}, v2')
        a.e(f'v_mul_lo_u32 v{V_T+1}, v{V_T+1}, s{S_TMP2}')
        a.e(f'v_add_u32 v{V_T+2}, {4*j}, v{V_T}')
        a.e(f'v_and_b32 v{V_T+2}, 7, v{V_T+2}')
        a.e(f'v_xor_b32 v{V_T+2}, v{V_T+2}, v3')
        a.e(f'v_lshl_add_u32 v{V_OFFP+j}, v{V_T+2}, 4, v{V_T+1}')
    a.e(f's_mov_b32 s{S_TMP}, {64*896}')
    a.e(f'v_mul_lo_u32 v{V_T+1}, v2, s{S_TMP}')
    for q in range(4):
        a.e(f'v_add_u32 v{V_T+2}, {4*q}, v{V_T}')
        a.e(f'v_and_b32 v{V_T+2}, 7, v{V_T+2}')
        a.e(f'v_xor_b32 v{V_T+2}, v{V_T+2}, v3')
        a.e(f'v_lshl_add_u32 v{V_T+2}, v{V_T+2}, 4, v{V_T+1}')
        a.e(f'v_add_u32 v{V_OFFS+q}, {8*q*64*896}, v{V_T+2}')
    a.e(f'v_and_b32 v2, 31, v{V_LANE}')
    a.e(f'v_lshrrev_b32 v3, 5, v{V_LANE}')
    a.e(f'v_lshlrev_b32 v2, 18, v2')
    a.e(f'v_lshl_add_u32 v2, v3, 3, v2')
    a.vm = []; a.lg = []
    for ks in range(2):
        for hh in range(2):
            a.vmem(f'buffer_load_dwordx2 {ar(A_CR + 4*ks + 2*hh, 2)}, v2, s[{SRD_CR}:{SRD_CR+3}], 0 offen offset:{ks*32 + hh*16}', ('T', 0))
            a.vmem(f'buffer_load_dwordx2 {ar(A_CI + 4*ks + 2*hh, 2)}, v2, s[{SRD_CI}:{SRD_CI+3}], 0 offen offset:{ks*32 + hh*16}', ('T', 0))
    a.e(f'v_and_b32 v{V_T}, 31, v{V_LANE}')
    a.e(f'v_lshlrev_b32 v{V_T}, 16, v{V_T}')
    a.e(f'v_lshl_add_u32 v{V_T}, v3, 7, v{V_T}')
    a.e(f'v_lshlrev_b32 v{V_T+1}, 4, v3')
    k1_main(a, 'A', a1_epilogue2)
    a.e('s_endpgm')
    a.label('L_k1_done')
    a.e('s_endpgm')

def a1_epilogue2(a, p):
    acc = V_ACC + p * 64
    a.c(f'A1 epilogue pass {p}')
    a.nop(12)
    if p == 0:
        a.wait_vm([('T', 0)])
    skip = a.newlabel('nogate')
    a.e(f's_cmp_lg_u32 s{S_C1}, 1')
    a.e(f's_cbranch_scc1 {skip}')
    a.e('s_mov_b64 s[44:45], exec')
    a.e('s_mov_b32 exec_lo, 1')
    a.e('s_mov_b32 exec_hi, 1')
    for jj in range(4):
        for quad in range(4):
            a.e(f'buffer_store_dwordx4 {vr(acc + 16*jj + 4*quad, 4)}, v{V_T+1}, s[{SRD_L}:{SRD_L+3}], s{S_ST1} offen offset:{(4*p+jj)*128 + quad*32}')
    a.e('s_mov_b64 exec, s[44:45]')
    a.e('s_waitcnt vmcnt(0)')
    a.label(skip)
    pk = 192
    for jj in range(4):
        for i in range(8):
            a.e(f'v_cvt_pk_bf16_f32 v{pk + 8*jj + i}, v{acc + 16*jj + 2*i}, v{acc + 16*jj + 2*i + 1}')
    a.nop(2)
    D = [(96, 112), (32, 48)]
    for half in range(2):
        for t in range(2):
            jj = 2 * half + t
            d2r, d2i = D[t]
            for ks in range(2):
                cin = '0' if ks == 0 else vr(d2r, 16)
                a.e(f'v_mfma_f32_32x32x16_bf16 {vr(d2r,16)}, {vr(pk + 8*jj + 4*ks, 4)}, {ar(A_CR + 4*ks, 4)}, {cin}')
            for ks in range(2):
                cin = '0' if ks == 0 else vr(d2i, 16)
                a.e(f'v_mfma_f32_32x32x16_bf16 {vr(d2i,16)}, {vr(pk + 8*jj + 4*ks, 4)}, {ar(A_CI + 4*ks, 4)}, {cin}')
        a.nop(12)
        for t in range(2):
            d2r, d2i = D[t]
            for i in range(8):
                a.e(f'v_sub_f32 v{d2r+i}, v{d2r+i}, v{d2i+8+i}')
                a.e(f'v_add_f32 v{d2r+8+i}, v{d2i+i}, v{d2r+8+i}')
        k = 2 * p + half
        for i in range(8):
            a.e(f'v_cvt_pk_bf16_f32 v{224+4*i+k}, v{D[0][0]+i}, v{D[1][0]+i}')
            a.e(f'v_cvt_pk_bf16_f32 v{64+4*i+k}, -v{D[0][0]+8+i}, -v{D[1][0]+8+i}')
        a.nop(3)
    if p == 1:
        for i in range(8):
            off = ((i // 4) * 8 + (i % 4)) * 32
            a.vmem(f'buffer_store_dwordx4 {vr(224+4*i,4)}, v{V_T}, s[{SRD_O}:{SRD_O+3}], s{S_ST0} offen offset:{off}', ('ST', i, 0))
            a.vmem(f'buffer_store_dwordx4 {vr(64+4*i,4)}, v{V_T}, s[{SRD_O}:{SRD_O+3}], s{S_ST0} offen offset:{off+16}', ('ST', i, 1))

K2_NS = 16
K2_RING = K2_NS * 2048
K2_FB = 4 * K2_RING
K2_LDS = K2_FB + 16384
K2_DEPTH = 12

def gen_k2(a):
    name = 'k2_kernel'
    SRD_H, SRD_WD, SRD_V, SRD_F, SRD_LG, SRD_OUT = 12, 16, 20, 24, 28, 32
    S_HG0, S_HG1, S_WD, S_RING, S_T1, S_C, S_X = 8, 9, 10, 11, 36, 37, 38
    V_HOFF = 4
    V_WDOFF = 12
    V_BT2 = 14
    V_VOFF = 16
    V_SGN = 17
    V_FA = 18
    V_LG = 19
    V_OOFF = 20
    V_TT = 24
    ACC = 64
    YA = 128
    V_VF = 144
    V_FF = 176
    V_RED = 208
    A_H = 0
    NHB = 16
    A_WF = 128
    a.raw('.text')
    a.raw(f'.globl {name}')
    a.raw('.p2align 8')
    a.raw(f'.type {name},@function')
    a.label(name)
    a.e('s_cmp_ge_u32 s2, 224')
    a.e('s_cbranch_scc1 L_k2_done')
    load_kernargs(a)
    a.e(f'v_lshrrev_b32 v2, 6, v0')
    a.e(f'v_and_b32 v{V_LANE}, 63, v0')
    a.e('s_nop 0')
    a.e(f'v_readfirstlane_b32 s{S_W}, v2')
    a.e('s_and_b32 s3, s2, 7')
    a.e('s_lshr_b32 s2, s2, 3')
    a.e(f's_lshl_b32 s{S_T1}, s3, 2')
    a.e(f's_and_b32 s5, s2, 3')
    a.e(f's_add_u32 s{S_T1}, s{S_T1}, s5')
    a.e(f's_lshr_b32 s{S_C}, s2, 2')
    a.e(f's_mul_i32 s{S_HG0}, s{S_T1}, {2*114688}')
    a.e(f's_mul_i32 s5, s{S_W}, 28672')
    a.e(f's_add_u32 s{S_HG0}, s{S_HG0}, s5')
    a.e(f's_add_u32 s{S_HG1}, s{S_HG0}, 114688')
    a.e(f's_mul_i32 s{S_WD}, s{S_W}, {448*896}')
    a.e(f's_lshl_b32 s5, s{S_C}, 7')
    a.e(f's_add_u32 s{S_WD}, s{S_WD}, s5')
    a.e(f's_mul_i32 s{S_RING}, s{S_W}, {K2_RING}')
    a.e('s_waitcnt lgkmcnt(0)')
    srd(a, SRD_H, P_WS, H_BYTES, WS_H)
    srd(a, SRD_WD, P_WD, F_ * D_ * 2)
    srd(a, SRD_V, P_WS, V_BYTES, WS_V)
    srd(a, SRD_LG, P_WS, L_BYTES, WS_L)
    srd(a, SRD_OUT, P_OUT, S_ * D_ * 2)
    a.e(f's_and_b32 s5, s{S_W}, 1')
    a.e(f's_cmp_eq_u32 s5, 0')
    a.e(f's_cselect_b32 s{SRD_F}, s{P_SR}, s{P_SI}')
    a.e(f's_cselect_b32 s{SRD_F+1}, s{P_SR+1}, s{P_SI+1}')
    a.e(f's_mov_b32 s{SRD_F+2}, {S_*S_*2}')
    a.e(f's_mov_b32 s{SRD_F+3}, 0x20000')
    a.e(f'v_lshlrev_b32 v{V_HOFF}, 4, v{V_LANE}')
    for k in range(1, 7):
        a.e(f'v_add_u32 v{V_HOFF+k}, {k*4096}, v{V_HOFF}')
    a.e(f'v_lshrrev_b32 v2, 3, v{V_LANE}')
    a.e(f'v_and_b32 v3, 7, v{V_LANE}')
    a.e(f'v_bfe_u32 v{V_TT}, v{V_LANE}, 4, 1')
    a.e(f'v_lshlrev_b32 v{V_TT}, 2, v{V_TT}')
    a.e(f'v_xor_b32 v{V_TT}, v{V_TT}, v3')
    a.e(f'v_lshlrev_b32 v{V_TT}, 4, v{V_TT}')
    a.e(f'v_mul_u32_u24 v{V_TT+1}, 896, v2')
    a.e(f'v_add_u32 v{V_WDOFF}, v{V_TT}, v{V_TT+1}')
    a.e(f'v_add_u32 v{V_WDOFF+1}, {8*896}, v{V_WDOFF}')
    a.e(f'v_lshrrev_b32 v{V_TT}, 4, v{V_LANE}')
    a.e(f'v_lshlrev_b32 v{V_TT+1}, 17, v2')
    for j in range(4):
        a.e(f'v_add_u32 v{V_TT+2}, {4*j}, v{V_TT}')
        a.e(f'v_and_b32 v{V_TT+2}, 7, v{V_TT+2}')
        a.e(f'v_xor_b32 v{V_TT+2}, v{V_TT+2}, v3')
        a.e(f'v_lshl_add_u32 v{V_TT+2}, v{V_TT+2}, 4, v{V_TT+1}')
        a.e(f'v_add_u32 v{V_TT+4+j}, {8*j*131072}, v{V_TT+2}')
    a.e(f's_lshr_b32 s5, s{S_W}, 1')
    a.e(f's_lshl_b32 s6, s5, 10')
    a.e(f's_add_u32 s6, s6, s{S_T1}')
    a.e(f's_lshl_b32 s7, s6, 12')
    a.e(f's_lshl_b32 s39, s{S_W}, 12')
    a.e(f's_add_u32 s39, s39, {K2_FB}')
    a.vm = []; a.lg = []
    for j in range(4):
        dma(a, V_TT + 4 + j, SRD_F, 7, 39, j * 1024, ('F',))
    a.e(f's_and_b32 s40, s{S_W}, 1')
    a.e(f's_lshl_b32 s40, s40, 5')
    a.e(f's_lshl_b32 s41, s{S_C}, 6')
    a.e(f's_add_u32 s40, s40, s41')
    a.e(f'v_and_b32 v2, 31, v{V_LANE}')
    a.e(f'v_lshrrev_b32 v3, 5, v{V_LANE}')
    a.e(f'v_add_u32 v{V_TT}, s40, v2')
    a.e(f'v_sub_u32 v{V_TT+1}, 448, v{V_TT}')
    a.e(f's_sub_u32 s41, 32, s{S_T1}')
    a.e(f's_and_b32 s41, s41, 31')
    a.e(f'v_mov_b32 v{V_TT+2}, s{S_T1}')
    a.e(f'v_mov_b32 v{V_TT+3}, s41')
    a.e(f'v_cmp_lt_u32 vcc, 224, v{V_TT}')
    a.e('s_nop 1')
    a.e(f'v_cndmask_b32 v{V_TT}, v{V_TT}, v{V_TT+1}, vcc')
    a.e(f'v_cndmask_b32 v{V_TT+2}, v{V_TT+2}, v{V_TT+3}, vcc')
    a.e(f'v_mov_b32 v{V_TT+3}, 0x80008000')
    a.e(f'v_cndmask_b32 v{V_SGN}, 0, v{V_TT+3}, vcc')
    a.e(f'v_lshlrev_b32 v{V_VOFF}, 16, v{V_TT+2}')
    a.e(f'v_lshl_add_u32 v{V_VOFF}, v{V_TT}, 5, v{V_VOFF}')
    a.e(f'v_lshl_add_u32 v{V_VOFF}, v3, 4, v{V_VOFF}')
    a.e(f'v_cmp_eq_u32 vcc, 1, v3')
    a.e('s_nop 1')
    a.e(f'v_cndmask_b32 v{V_SGN}, 0, v{V_SGN}, vcc')
    for j in range(8):
        a.e(f's_mov_b32 s5, {j*8192}')
        a.vmem(f'buffer_load_dwordx4 {vr(V_VF+4*j,4)}, v{V_VOFF}, s[{SRD_V}:{SRD_V+3}], s5 offen', ('V',))
    a.e(f'v_lshl_add_u32 v{V_TT}, v2, 5, s6')
    a.e(f'v_and_b32 v{V_TT+1}, 63, v{V_TT}')
    a.e(f'v_lshrrev_b32 v{V_TT+2}, 6, v{V_TT}')
    a.e(f'v_lshl_add_u32 v{V_TT+1}, v{V_TT+1}, 5, v{V_TT+2}')
    a.e(f'v_lshlrev_b32 v{V_TT+1}, 2, v{V_TT+1}')
    a.vmem(f'buffer_load_dword v{V_LG}, v{V_TT+1}, s[{SRD_LG}:{SRD_LG+3}], 0 offen', ('LG',))
    a.e(f'v_mul_u32_u24 v{V_OOFF}, 896, v{V_TT}')
    a.e(f'v_lshl_add_u32 v{V_OOFF}, v3, 4, v{V_OOFF}')
    a.e(f's_lshl_b32 s40, s40, 1')
    a.e(f'v_add_u32 v{V_OOFF}, s40, v{V_OOFF}')
    a.e(f'v_bfe_u32 v{V_TT}, v2, 1, 3')
    a.e(f'v_lshlrev_b32 v{V_TT}, 4, v{V_TT}')
    a.e(f'v_lshl_add_u32 v{V_TT}, v2, 7, v{V_TT}')
    a.e(f'v_lshl_add_u32 v{V_TT}, v3, 12, v{V_TT}')
    a.e(f's_lshr_b32 s5, s{S_W}, 1')
    a.e(f's_lshl_b32 s5, s5, 13')
    a.e(f's_add_u32 s5, s5, {K2_FB}')
    a.e(f'v_add_u32 v{V_FA}, s5, v{V_TT}')
    a.e(f'v_bfe_u32 v{V_TT}, v{V_LANE}, 2, 2')
    a.e(f'v_lshl_add_u32 v{V_TT}, v3, 2, v{V_TT}')
    a.e(f'v_lshlrev_b32 v{V_TT}, 7, v{V_TT}')
    a.e(f'v_bfe_u32 v{V_TT+1}, v{V_LANE}, 3, 1')
    a.e(f'v_lshl_add_u32 v{V_TT}, v{V_TT+1}, 6, v{V_TT}')
    a.e(f'v_bfe_u32 v{V_TT+1}, v{V_LANE}, 4, 1')
    a.e(f'v_lshl_add_u32 v{V_TT}, v{V_TT+1}, 5, v{V_TT}')
    a.e(f'v_and_b32 v{V_TT+1}, 3, v{V_LANE}')
    a.e(f'v_lshl_add_u32 v{V_TT}, v{V_TT+1}, 3, v{V_TT}')
    a.e(f'v_add_u32 v{V_BT2}, s{S_RING}, v{V_TT}')
    a.e(f'v_xor_b32 v{V_BT2+1}, 64, v{V_BT2}')

    def issue(u):
        slot = u % K2_NS
        a.e(f's_add_u32 s5, s{S_WD}, {u*16*896}')
        for q in range(2):
            dma(a, V_WDOFF + q, SRD_WD, 5, S_RING, slot * 2048 + q * 1024, ('W', u))
        hb = A_H + (u % NHB) * 8
        for G in range(2):
            a.vmem(f'buffer_load_dwordx4 {ar(hb+4*G,4)}, v{V_HOFF + u//4}, s[{SRD_H}:{SRD_H+3}], s{S_HG0+G} offen offset:{(u%4)*1024}', ('H', u))
    def readW(u, T):
        slot = u % K2_NS
        buf = A_WF + (u % 2) * 8 + T * 4
        for uu in range(2):
            a.lds(f'ds_read_b64_tr_b16 {ar(buf+2*uu,2)}, v{V_BT2+T} offset:{slot*2048 + uu*1024}', ('WF', u, T))
    for u in range(K2_DEPTH):
        issue(u)
    a.wait_vm([('W', 0)])
    readW(0, 0); readW(0, 1)
    for u in range(28):
        a.wait_vm([('H', u), ('W', u + 1)])
        if u + K2_DEPTH < 28:
            issue(u + K2_DEPTH)
        hb = A_H + (u % NHB) * 8
        for T in range(2):
            a.wait_lg([('WF', u, T)])
            buf = A_WF + (u % 2) * 8 + T * 4
            for G in range(2):
                acc = ACC + (2 * T + G) * 16
                cin = '0' if u == 0 else vr(acc, 16)
                a.e(f'v_mfma_f32_32x32x16_bf16 {vr(acc,16)}, {ar(buf,4)}, {ar(hb+4*G,4)}, {cin}')
            if u + 1 < 28:
                readW(u + 1, T)
    a.nop(12)
    a.e(f'v_lshlrev_b32 v{V_TT}, 4, v{V_LANE}')
    a.e(f'v_add_u32 v{V_TT}, s{S_RING}, v{V_TT}')
    for tile in range(4):
        for quad in range(4):
            a.lds(f'ds_write_b128 v{V_TT}, {vr(ACC + tile*16 + quad*4, 4)} offset:{tile*4096 + quad*1024}', ('RW',))
    a.wait_vm([('F',), ('V',), ('LG',)])
    a.wait_lg_all()
    a.e('s_barrier')
    a.e(f's_and_b32 s5, s{S_W}, 1')
    a.e(f's_lshl_b32 s5, s5, 1')
    a.e(f's_lshr_b32 s6, s{S_W}, 1')
    a.e(f's_add_u32 s5, s5, s6')
    a.e(f's_lshl_b32 s5, s5, 12')
    a.e(f'v_lshlrev_b32 v{V_TT}, 4, v{V_LANE}')
    a.e(f'v_add_u32 v{V_TT}, s5, v{V_TT}')
    for ww in range(4):
        dst = ACC + ww * 16
        if ww * K2_RING >= 65536:
            pass
        a.e(f'v_add_u32 v{V_TT+1+ww}, {ww*K2_RING}, v{V_TT}')
    for ww in range(4):
        dst = ACC + ww * 16
        for quad in range(4):
            a.lds(f'ds_read_b128 {vr(dst + quad*4, 4)}, v{V_TT+1+ww} offset:{quad*1024}', ('RR', ww))
    for j in range(8):
        a.e(f'v_xor_b32 v{V_TT+8+j}, {j*16}, v{V_FA}')
    a.wait_lg([('RR', 1)])
    for j in range(8):
        a.lds(f'ds_read_b128 {vr(V_FF+4*j,4)}, v{V_TT+8+j}', ('FF', j))
    for j in range(8):
        for r in range(4):
            a.e(f'v_xor_b32 v{V_VF+4*j+r}, v{V_SGN}, v{V_VF+4*j+r}')
    a.wait_lg_all()
    for j in range(8):
        cin = '0' if j == 0 else vr(YA, 16)
        a.e(f'v_mfma_f32_32x32x16_bf16 {vr(YA,16)}, {vr(V_VF+4*j,4)}, {vr(V_FF+4*j,4)}, {cin}')
    for i in range(16):
        a.e(f'v_add_f32 v{ACC+i}, v{ACC+i}, v{ACC+16+i}')
        a.e(f'v_add_f32 v{ACC+32+i}, v{ACC+32+i}, v{ACC+48+i}')
    for i in range(16):
        a.e(f'v_add_f32 v{ACC+i}, v{ACC+i}, v{ACC+32+i}')
    a.e(f's_mov_b32 s5, {NLOG2E:#x}')
    a.e(f'v_mul_f32 v{V_LG}, s5, v{V_LG}')
    a.e(f'v_exp_f32 v{V_LG}, v{V_LG}')
    a.e('s_nop 0')
    a.e(f'v_add_f32 v{V_LG}, 1.0, v{V_LG}')
    a.e(f'v_rcp_f32 v{V_LG}, v{V_LG}')
    a.nop(12)
    for i in range(16):
        a.e(f'v_sub_f32 v{YA+i}, v{YA+i}, v{ACC+i}')
    for i in range(16):
        a.e(f'v_fma_f32 v{YA+i}, v{V_LG}, v{YA+i}, v{ACC+i}')
    PK = V_RED
    for i in range(8):
        a.e(f'v_cvt_pk_bf16_f32 v{PK+i}, v{YA+2*i}, v{YA+2*i+1}')
    a.nop(2)
    for qp in range(2):
        b = PK + 4 * qp
        a.e(f'v_permlane32_swap_b32 v{b}, v{b+2}')
        a.e(f'v_permlane32_swap_b32 v{b+1}, v{b+3}')
    a.nop(2)
    for qp in range(2):
        b = PK + 4 * qp
        a.vmem(f'buffer_store_dwordx4 {vr(b,4)}, v{V_OOFF}, s[{SRD_OUT}:{SRD_OUT+3}], 0 offen offset:{qp*32}', ('O',))
    a.label('L_k2_done')
    a.e('s_endpgm')

def descriptor(name, vgpr=512, accum=256, sgpr=96):
    return f'''.section .rodata,"a"
.p2align 6
.amdhsa_kernel {name}
  .amdhsa_next_free_vgpr {vgpr}
  .amdhsa_next_free_sgpr {sgpr}
  .amdhsa_accum_offset {accum}
  .amdhsa_group_segment_fixed_size 0
  .amdhsa_kernarg_size 104
  .amdhsa_user_sgpr_count 2
  .amdhsa_user_sgpr_kernarg_segment_ptr 1
  .amdhsa_system_sgpr_workgroup_id_x 1
.end_amdhsa_kernel
'''

def main():
    a = Asm()
    a.raw(HEADER.rstrip('\n'))
    a.raw(f'; @launch kernel=k1_kernel grid=(256,1,1) block=(256,1,1) lds={K1_LDS}')
    a.raw(f'; @launch kernel=k2_kernel grid=(224,1,1) block=(256,1,1) lds={K2_LDS}')
    a.raw('.amdgcn_target "amdgcn-amd-amdhsa--gfx950"')
    gen_k1(a)
    a.vm = []; a.lg = []
    gen_k2(a)
    txt = a.text() + descriptor('k1_kernel') + descriptor('k2_kernel')
    out = sys.argv[1] if len(sys.argv) > 1 else f'cdna_kernels/{NAME}.s'
    open(out, 'w').write(txt)
    print('wrote', out, len(txt), 'bytes')

if __name__ == '__main__':
    main()
```
